```python
import torch

def _softmax(x, axis=-1):
    return torch.softmax(x, dim=axis)
def _gelu(x):
    return torch.nn.functional.gelu(x, approximate="tanh")
def _silu(x):
    return torch.nn.functional.silu(x)
def _sigmoid(x):
    return torch.sigmoid(x)
def _layernorm(x, axis=-1, eps=1e-5):
    m = x.mean(dim=axis, keepdim=True)
    v = x.var(dim=axis, keepdim=True, unbiased=False)
    return (x - m) / torch.sqrt(v + eps)
def _scatter_add(tgt, idx, src, axis=0):
    return tgt.clone().index_add_(axis, idx, src)
def _segment_sum(src, seg, n):
    out = torch.zeros((n,) + src.shape[1:], dtype=src.dtype)
    return out.index_add_(0, seg, src)
def _pad(x, pw):
    flat = tuple(v for pair in reversed(pw) for v in pair)
    return torch.nn.functional.pad(x, flat)

kernel_name = 'standalone__edge_featured_mpnn_mpnn__graph'

def setup_inputs():

    _w = (lambda a: (lambda t: t.to(torch.bfloat16) if t.is_floating_point() else t)(torch.as_tensor(a)))
    N, deg, D, De = 10000, 32, 128, max(16, 1)
    E = N * deg
    H = 2 * D
    return {
        "x": _w((lambda *s: torch.randn(*s, dtype=torch.bfloat16) * 0.05)(N, D)),
        "e_attr": _w((lambda *s: torch.randn(*s, dtype=torch.bfloat16) * 0.8)(E, De)),
        "src": _w((lambda lo, hi, *s: torch.randint(lo, hi, s))(0, N, E).to(torch.int64)),
        "dst": _w((lambda lo, hi, *s: torch.randint(lo, hi, s))(0, N, E).to(torch.int64)),
        "w1": _w((lambda *s: torch.randn(*s, dtype=torch.bfloat16) * 0.8)(2 * D + De, H) * (1.0 / (2 * D + De) ** 0.5)),
        "b1": _w((lambda *s: torch.randn(*s, dtype=torch.bfloat16) * 0.4)(H) * 0.01),
        "w2": _w((lambda *s: torch.randn(*s, dtype=torch.bfloat16) * 0.05)(H, D) * (1.0 / H ** 0.5)),
        "b2": _w((lambda *s: torch.randn(*s, dtype=torch.bfloat16) * 0.05)(D) * 0.01),
    }

def reference(x, e_attr, src, dst, w1, b1, w2, b2):
    N, D = x.shape
    h_src = x[src]
    h_dst = x[dst]
    m_in = torch.concatenate([h_src, h_dst, e_attr], axis=-1)
    h = _silu(m_in @ w1 + b1)
    msg = h @ w2 + b2
    return _segment_sum(msg, dst, N)
```

```python
import sys, struct, math

NAME = "standalone__edge_featured_mpnn_mpnn__graph"
N, E = 10000, 320000
NB, NPB = 250, 40
NCH, EPC = 125, 2560
LOG2E = 1.4426950408889634
def f32(x): return "0x%08x" % struct.unpack("<I", struct.pack("<f", x))[0]

WS_ATAB = 4096
WS_RECS = 0x500000
WS_W1BF = 0x900000
WS_W2F  = WS_W1BF + 65536
WS_W1CF = WS_W2F + 65536
WS_DBG  = 0xA00000
MARK = 0xFFFFFFFE

class Opt:
    stamps = False
    stpol = ""
    force_slow = False
    noea = False
    x_nodma = False
    x_nolds = False
    x_one = False
    x_norw = False
    x_noidx = False
    x_prio = 0
    cyc = False
    noa = False
opt = Opt()

class Asm:
    def __init__(s): s.l = []; s.nlab = 0
    def __call__(s, *lines):
        for x in lines:
            for y in x.split("\n"):
                y = y.strip()
                if y: s.l.append(("" if y.endswith(":") else "    ") + y)
    def c(s, t): s.l.append("    ; " + t)
    def lab(s, p="L"): s.nlab += 1; return f"{p}_{s.nlab}"
    def text(s): return "\n".join(s.l) + "\n"

def vr(a, n): return f"v[{a}:{a+n-1}]" if n > 1 else f"v{a}"
def sr(a, n): return f"s[{a}:{a+n-1}]" if n > 1 else f"s{a}"

def srd(a, d, base, nrec, add=0, stride=0):
    if add:
        a(f"s_add_u32 s{d}, s{base}, {add}", f"s_addc_u32 s{d+1}, s{base+1}, 0")
        hi = d + 1
    else:
        a(f"s_mov_b32 s{d}, s{base}")
        hi = base + 1
    if stride:
        a(f"s_and_b32 s{d+1}, s{hi}, 0xffff", f"s_or_b32 s{d+1}, s{d+1}, {stride << 16}")
    elif not add:
        a(f"s_mov_b32 s{d+1}, s{hi}")
    a(f"s_mov_b32 s{d+2}, {nrec}", f"s_mov_b32 s{d+3}, 0x00020000")

STAMP0 = 76
def stamp(a, n):
    if opt.stamps:
        a(f"s_{'memtime' if opt.cyc else 'memrealtime'} s[{STAMP0+2*n}:{STAMP0+2*n+1}]")
def stamps_out(a, kern, nst, ws=20):
    if not opt.stamps: return
    a("s_waitcnt lgkmcnt(0)")
    srd(a, 60, ws, 0x100000, add=WS_DBG + kern * 0x80000)
    a("s_mov_b64 exec, 1")
    a("s_lshl_b32 s64, s2, 3", "s_add_u32 s64, s64, s22", "s_lshl_b32 s64, s64, 6", "v_mov_b32 v1, s64")
    for i in range(nst):
        a(f"v_mov_b32 v2, s{STAMP0+2*i}", f"buffer_store_dword v2, v1, s[60:63], 0 offen offset:{4*i}", "s_nop 1")

def gen_k1(a):
    K = "mpnn_prep_kernel"
    a(f".globl {K}", ".p2align 8", f".type {K},@function", f"{K}:")
    NG, NP = 250, 5
    a(f"s_cmp_ge_u32 s2, {NG+NP+NCH}", "s_cbranch_scc1 K1_done")
    stamp(a, 0)
    a("s_load_dwordx16 s[4:19], s[0:1], 0", "s_load_dwordx2 s[20:21], s[0:1], 80")
    a("v_lshrrev_b32 v1, 6, v0", "v_and_b32 v2, 63, v0", "s_nop 0", "v_readfirstlane_b32 s22, v1")
    a(f"s_cmp_ge_u32 s2, {NG+NP}", "s_cbranch_scc1 K1_sort")
    a(f"s_cmp_eq_u32 s2, {NG+4}", "s_cbranch_scc1 K1_w1c")
    WL, XL, SL = 0, 32768, 53248
    a.c("role params: s23 = woff, s24 = log2(row stride), s[26:27] = W pointer, s25 = bytes")
    a("s_and_b32 s28, s2, 1")
    a("s_lshl_b32 s23, s28, 8", "s_mov_b32 s24, 9")
    a("s_waitcnt lgkmcnt(0)")
    a("s_mov_b32 s26, s12", "s_mov_b32 s27, s13", f"s_mov_b32 s25, {272*512}")
    a(f"s_cmp_lt_u32 s2, {NG}", "s_cbranch_scc1 K1_par")
    a(f"s_add_u32 s23, s23, {128*512}")
    a(f"s_cmp_lt_u32 s2, {NG+2}", "s_cbranch_scc1 K1_par")
    a("s_lshl_b32 s23, s28, 15", "s_mov_b32 s24, 8", "s_mov_b32 s26, s16", "s_mov_b32 s27, s17", f"s_mov_b32 s25, {256*256}")
    a("K1_par:")
    a("s_mov_b32 s32, s26", "s_mov_b32 s33, s27", "s_mov_b32 s34, s25", "s_mov_b32 s35, 0x00020000")
    a("v_lshrrev_b32 v3, 4, v2")
    a("v_and_b32 v4, 15, v2")
    a("s_lshl_b32 s29, s22, 4")
    a("v_add_u32 v5, s29, v3", "v_lshlrev_b32 v5, s24, v5")
    a("v_lshrrev_b32 v6, 1, v4", "v_xor_b32 v6, v6, v3", "v_lshlrev_b32 v6, 5, v6")
    a("v_and_b32 v7, 1, v2", "v_lshl_add_u32 v6, v7, 4, v6")
    a("v_xor_b32 v7, 0x80, v6", "v_add_u32 v6, v5, v6", "v_add_u32 v7, v5, v7")
    a("s_lshl_b32 s30, 4, s24")
    a("s_lshl_b32 s31, s22, 12")
    for m in range(4):
        a(f"s_add_u32 m0, s31, {WL + 1024*m}", "s_nop 0")
        a(f"buffer_load_dwordx4 v{6 if m < 2 else 7}, s[32:35], s23 offen lds")
        if m < 3: a("s_add_u32 s23, s23, s30")
    a(f"s_cmp_ge_u32 s2, {NG}", "s_cbranch_scc1 K1_nox")
    a.c("x block: 80 rows")
    srd(a, 36, 4, N * 256)
    a("s_lshr_b32 s40, s2, 1", f"s_mul_i32 s41, s40, {80*256}")
    a("s_and_b32 s42, s22, 3", "s_lshl_b32 s42, s42, 2")
    a("v_add_u32 v8, s42, v3", "v_xor_b32 v8, v8, v4", "v_lshlrev_b32 v8, 4, v8", "v_lshl_add_u32 v8, v3, 8, v8")
    a("s_lshl_b32 s42, s22, 10", "s_add_u32 s41, s41, s42")
    for m in range(3):
        if m == 2: a("s_cmp_ge_u32 s22, 4", "s_cbranch_scc1 K1_nox")
        a(f"s_add_u32 m0, s42, {XL + 8192*m}", "s_nop 0")
        a("buffer_load_dwordx4 v8, s[36:39], s41 offen lds")
        if m < 2: a("s_add_u32 s41, s41, 8192")
    a("K1_nox:")
    a.c("W frag read address: (8g+r)*256 + ((w ^ f)*32) + 8c, f = r | (g&1)<<2")
    a("v_lshrrev_b32 v9, 2, v4", "v_and_b32 v10, 1, v3", "v_lshl_or_b32 v10, v10, 2, v9", "v_xor_b32 v10, s22, v10")
    a("v_lshl_add_u32 v9, v3, 3, v9", "v_lshlrev_b32 v9, 8, v9", "v_lshl_add_u32 v9, v10, 5, v9")
    a("v_and_b32 v10, 3, v2", "v_lshl_add_u32 v9, v10, 3, v9")
    a.c("x frag read addresses v12..v15: j*256 + ((4s+g)^j)*16")
    for s in range(4):
        a(f"v_add_u32 v{12+s}, {4*s}, v3", f"v_xor_b32 v{12+s}, v{12+s}, v4", f"v_lshlrev_b32 v{12+s}, 4, v{12+s}",
          f"v_lshl_add_u32 v{12+s}, v4, 8, v{12+s}")
    a("s_waitcnt vmcnt(0)", "s_barrier")
    stamp(a, 1)
    WF = 16
    for s in range(4):
        for u in range(2):
            a(f"ds_read_b64_tr_b16 {vr(WF+4*s+2*u, 2)}, v9 offset:{WL + (32*s+4*u)*256}")
    a(f"s_cmp_ge_u32 s2, {NG}", "s_cbranch_scc1 K1_prepout")
    XF = 32
    for n in range(5):
        for s in range(4):
            a(f"ds_read_b128 {vr(XF+16*n+4*s, 4)}, v{12+s} offset:{XL + 4096*n}")
    acc = [112] + [XF + 16*(n-1) for n in range(1, 5)]
    a.c("staging write addr: j*256 + (((2w + (g>>1)) ^ j)*16) + 8(g&1)")
    a("v_lshrrev_b32 v10, 1, v3", "s_lshl_b32 s43, s22, 1", "v_add_u32 v10, s43, v10", "v_xor_b32 v10, v10, v4",
      "v_lshlrev_b32 v10, 4, v10", "v_lshl_add_u32 v10, v4, 8, v10", "v_and_b32 v11, 1, v3", "v_lshl_add_u32 v10, v11, 3, v10",
      f"v_add_u32 v10, {SL}, v10")
    a(f"s_mov_b32 s44, {f32(-LOG2E)}", "s_mov_b32 s45, s44")
    for n in range(5):
        a(f"s_waitcnt lgkmcnt({min(15, 16-4*n)})" if n > 0 else "s_waitcnt lgkmcnt(15)")
        if n == 0: pass
        for s in range(4):
            if n == 0 and s == 0: pass
            c = "0" if s == 0 else vr(acc[n], 4)
            a(f"v_mfma_f32_16x16x32_bf16 {vr(acc[n],4)}, {vr(WF+4*s,4)}, {vr(XF+16*n+4*s,4)}, {c}")
    a("s_nop 7")
    for n in range(5):
        r = acc[n]
        a(f"v_pk_mul_f32 {vr(r,2)}, {vr(r,2)}, s[44:45]", f"v_pk_mul_f32 {vr(r+2,2)}, {vr(r+2,2)}, s[44:45]",
          f"v_cvt_pk_bf16_f32 v{r}, v{r}, v{r+1}", f"v_cvt_pk_bf16_f32 v{r+1}, v{r+2}, v{r+3}",
          f"ds_write_b64 v10, {vr(r,2)} offset:{4096*n if 4096*n < 65536 else 0}")
    a.c("read back rows: piece i = t+512k, row = i>>4, c = i&15")
    a("v_lshrrev_b32 v5, 4, v0", "v_and_b32 v6, 15, v5", "v_xor_b32 v6, v6, v4", "v_lshlrev_b32 v6, 4, v6",
      "v_lshl_add_u32 v6, v5, 8, v6", f"v_add_u32 v6, {SL}, v6")
    a("v_lshlrev_b32 v7, 9, v5", "v_lshl_add_u32 v7, v4, 4, v7")
    srd(a, 48, 20, N * 512, add=WS_ATAB)
    a(f"s_mul_i32 s46, s40, {80*512}", "s_lshl_b32 s47, s28, 8", "s_add_u32 s46, s46, s47")
    a("s_waitcnt lgkmcnt(0)", "s_barrier")
    a("ds_read_b128 v[32:35], v6", "ds_read_b128 v[36:39], v6 offset:8192")
    a("s_cmp_ge_u32 s22, 4", "s_cbranch_scc1 K1_g2")
    a("ds_read_b128 v[40:43], v6 offset:16384", "s_add_u32 s47, s46, 32768", "s_waitcnt lgkmcnt(0)")
    a(f"buffer_store_dwordx4 v[40:43], v7, s[48:51], s47 offen {opt.stpol}")
    a("K1_g2:")
    a("s_add_u32 s47, s46, 16384", "s_waitcnt lgkmcnt(0)")
    a(f"buffer_store_dwordx4 v[32:35], v7, s[48:51], s46 offen {opt.stpol}")
    a(f"buffer_store_dwordx4 v[36:39], v7, s[48:51], s47 offen {opt.stpol}")
    a("s_branch K1_end")
    a("K1_prepout:")
    srd(a, 48, 20, 131072, add=WS_W1BF)
    a.c("W1b: ((8hf + w)*4 + s)*1024 ; W2: 65536 + (8w + 4kh + s)*1024")
    a("s_lshl_b32 s46, s28, 3", "s_add_u32 s46, s46, s22", "s_lshl_b32 s46, s46, 12")
    a("s_lshl_b32 s47, s22, 1", "s_add_u32 s47, s47, s28", "s_lshl_b32 s47, s47, 12", "s_add_u32 s47, s47, 65536")
    a(f"s_cmp_lt_u32 s2, {NG+2}", "s_cselect_b32 s46, s46, s47")
    a("v_lshlrev_b32 v5, 4, v2", "s_waitcnt lgkmcnt(0)")
    for s in range(4):
        a(f"buffer_store_dwordx4 {vr(WF+4*s,4)}, v5, s[48:51], s46 offen offset:{1024*s} {opt.stpol}")
    a("s_branch K1_end")
    a("K1_w1c:")
    a("s_waitcnt lgkmcnt(0)")
    srd(a, 32, 12, 272 * 512)
    srd(a, 48, 20, 8192, add=WS_W1CF)
    a("v_and_b32 v3, 31, v2", "v_lshrrev_b32 v4, 5, v2", "v_lshlrev_b32 v3, 1, v3", "v_lshl_add_u32 v3, v4, 12, v3")
    a("s_lshl_b32 s23, s22, 6", f"s_add_u32 s23, s23, {256*512}")
    for e in range(8):
        a(f"buffer_load_ushort v{8+e}, v3, s[32:35], s23 offen offset:{512*e}")
    a(f"s_mov_b32 s44, {f32(-LOG2E)}", "v_lshlrev_b32 v5, 4, v0", "s_waitcnt vmcnt(0)")
    for e in range(8):
        a(f"v_lshlrev_b32 v{8+e}, 16, v{8+e}", f"v_mul_f32 v{8+e}, s44, v{8+e}")
    for e in range(4):
        a(f"v_cvt_pk_bf16_f32 v{16+e}, v{8+2*e}, v{9+2*e}")
    a(f"buffer_store_dwordx4 v[16:19], v5, s[48:51], 0 offen {opt.stpol}")
    a("s_branch K1_end")
    a("K1_sort:")
    CNT = 32768
    a(f"s_sub_u32 s23, s2, {NG+NP}")
    a(f"s_mul_i32 s24, s23, {EPC*4}")
    a("v_lshlrev_b32 v1, 2, v0")
    a("s_waitcnt lgkmcnt(0)")
    srd(a, 28, 10, E * 4)
    srd(a, 32, 8, E * 4)
    a("s_add_u32 s25, s24, 4096", "s_add_u32 s26, s24, 8192")
    so = ["s24", "s24", "s25", "s25", "s26"]
    for k in range(5): a(f"buffer_load_dword v{4+k}, v1, s[28:31], {so[k]} offen offset:{2048*(k&1)}")
    for k in range(5): a(f"buffer_load_dword v{9+k}, v1, s[32:35], {so[k]} offen offset:{2048*(k&1)}")
    a("v_mov_b32 v16, -1", "v_mov_b32 v17, -1", "v_mov_b32 v18, -1", "v_mov_b32 v19, -1", "v_lshlrev_b32 v3, 4, v0", "v_mov_b32 v14, 0")
    for k in range(4): a(f"ds_write_b128 v3, v[16:19] offset:{8192*k}")
    a(f"ds_write_b32 v1, v14 offset:{CNT}")
    srd(a, 36, 20, NB * 16384, add=WS_RECS)
    a("s_mov_b32 s40, 52429", "s_mov_b32 s41, -40", f"s_mov_b32 s42, {MARK}", "v_mov_b32 v15, 1", "v_mov_b32 v40, s42")
    a("s_waitcnt lgkmcnt(0)", "s_barrier")
    for k in range(5):
        a(f"s_waitcnt vmcnt({9-k})")
        a(f"v_mul_u32_u24 v{20+k}, s40, v{4+k}", f"v_lshrrev_b32 v{20+k}, 21, v{20+k}", f"v_lshlrev_b32 v{25+k}, 2, v{20+k}",
          f"ds_add_rtn_u32 v{30+k}, v{25+k}, v15 offset:{CNT}")
    stamp(a, 1)
    for k in range(5):
        a(f"v_mad_i32_i24 v{4+k}, v{20+k}, s41, v{4+k}")
        a(f"v_add_u32 v35, {512*k}, v0" if k else "v_mov_b32 v35, v0")
        a(f"s_waitcnt vmcnt({4-k})")
        a(f"v_lshl_or_b32 v{9+k}, v{4+k}, 14, v{9+k}", f"v_lshl_or_b32 v{9+k}, v35, 20, v{9+k}")
    a("s_waitcnt lgkmcnt(0)")
    for k in range(5):
        a(f"v_cmp_lt_u32 vcc, 30, v{30+k}", f"v_min_u32 v{30+k}, 31, v{30+k}", f"v_lshlrev_b32 v{30+k}, 2, v{30+k}",
          f"v_cndmask_b32 v{9+k}, v{9+k}, v40, vcc", f"v_lshl_add_u32 v{30+k}, v{20+k}, 7, v{30+k}", f"ds_write_b32 v{30+k}, v{9+k}")
    a("v_lshrrev_b32 v5, 3, v0", "v_and_b32 v6, 7, v0", "v_lshlrev_b32 v5, 14, v5", "v_lshl_add_u32 v5, v6, 4, v5")
    a("s_lshl_b32 s24, s23, 7")
    a("s_waitcnt lgkmcnt(0)", "s_barrier")
    for k in range(4): a(f"ds_read_b128 {vr(44+4*k,4)}, v3 offset:{8192*k}")
    for k in range(4):
        a(f"s_waitcnt lgkmcnt({3-k})", f"buffer_store_dwordx4 {vr(44+4*k,4)}, v5, s[36:39], s24 offen {opt.stpol}")
        if k < 3: a(f"s_add_u32 s24, s24, {64*16384}")
    a("K1_end:")
    stamp(a, 2)
    if opt.stamps:
        a("s_waitcnt vmcnt(0)"); stamp(a, 3)
    stamps_out(a, 0, 4)
    a("K1_done:", "s_endpgm")
    return K, 120, 100, 73728

RING = 0
HB, RS = 65536, 1552
CNT2 = HB + 41 * RS
HIST = CNT2 + 1280
MISC = HIST + 128
LV = MISC + 64
LSTEPS, SMAX = 34, 30
LIST = 131072
QN = LIST + 2 * LSTEPS * 256
TAB = QN + 2 * LSTEPS * 32
NINFO = TAB + 2560
LDS2 = NINFO + 512
HSB, HSS = 0, 528
assert LV + 256 <= LIST

def gen_k2(a):
    K = "mpnn_main_kernel"
    a(f".globl {K}", ".p2align 8", f".type {K},@function", f"{K}:")
    W1C, I0, I1 = 8, 16, 20
    SEL, FLAG, SHF = 24, 26, 28
    DMAX, BADDR, BCON, QB = 29, 30, 31, 32
    LA, LE, LQB, LQH = 34, 35, 36, 37
    ADV1, ADV2 = 38, 40
    HADDR, HCON, QH = 42, 44, 46
    EID = 48
    IDX = 50
    RD = 58
    BOP = 62
    NN, DD, MM, OLD = 64, 66, 68, 70
    EA = 72
    AOP = 88
    T = 104
    Y = [120, 136]
    W2 = 152
    TMP = 184
    NV = 256
    SA, SE = 28, 32
    a(f"s_cmp_ge_u32 s2, {NB}", "s_cbranch_scc1 K2_done")
    stamp(a, 0)
    a("s_load_dwordx16 s[4:19], s[0:1], 0", "s_load_dwordx2 s[20:21], s[0:1], 80", "s_load_dwordx2 s[24:25], s[0:1], 64")
    a("v_lshrrev_b32 v1, 6, v0", "v_and_b32 v2, 63, v0", "s_nop 0", "v_readfirstlane_b32 s22, v1")
    a("v_lshrrev_b32 v3, 4, v2", "v_and_b32 v4, 15, v2")
    a("v_and_b32 v5, 31, v2", "v_lshrrev_b32 v6, 5, v2")
    a("s_and_b32 s26, s22, 3", "s_lshr_b32 s27, s22, 2")
    REC = TMP
    a.c("record offsets: (t>>2)*128 + (t&3)*16")
    a("v_lshrrev_b32 v7, 2, v0", f"v_and_b32 v{TMP+8}, 3, v0", f"v_lshlrev_b32 v{TMP+8}, 4, v{TMP+8}", f"v_lshl_add_u32 v{TMP+8}, v7, 7, v{TMP+8}")
    a("s_lshl_b32 s23, s2, 14")
    for i in range(8): a(f"v_mov_b32 v{REC+i}, -1")
    a("s_waitcnt lgkmcnt(0)")
    srd(a, 36, 20, NB * 16384, add=WS_RECS)
    a(f"v_cmp_gt_u32 vcc, {4*NCH}, v0", "s_and_saveexec_b64 s[40:41], vcc")
    a(f"buffer_load_dwordx4 {vr(REC,4)}, v{TMP+8}, s[36:39], s23 offen")
    a(f"buffer_load_dwordx4 {vr(REC+4,4)}, v{TMP+8}, s[36:39], s23 offen offset:64")
    a("s_mov_b64 exec, s[40:41]")
    a.c("x rows -> LDS (ring area), 10 DMA of 4 rows")
    srd(a, 44, 4, N * 256)
    a(f"s_mul_i32 s48, s2, {NPB*256}")
    a("s_lshl_b32 s49, s26, 2")
    a(f"v_add_u32 v{TMP+9}, s49, v3", f"v_xor_b32 v{TMP+9}, v{TMP+9}, v4", f"v_lshlrev_b32 v{TMP+9}, 4, v{TMP+9}", f"v_lshl_add_u32 v{TMP+9}, v3, 8, v{TMP+9}")
    a("s_lshl_b32 s49, s22, 10", "s_add_u32 s48, s48, s49", "s_mov_b32 m0, s49", "s_nop 0")
    a(f"buffer_load_dwordx4 v{TMP+9}, s[44:47], s48 offen lds")
    a("s_cmp_ge_u32 s22, 2", "s_cbranch_scc1 K2_nox2")
    a("s_add_u32 s48, s48, 8192", "s_add_u32 m0, s49, 8192", "s_nop 0")
    a(f"buffer_load_dwordx4 v{TMP+9}, s[44:47], s48 offen lds")
    a("K2_nox2:")
    a.c("weight fragments")
    srd(a, 52, 20, 131072 + 8192, add=WS_W1BF)
    W1B = Y[0]
    a(f"v_lshlrev_b32 v{TMP+10}, 4, v2", "s_lshl_b32 s48, s22, 13", "s_add_u32 s49, s48, 4096")
    for f in range(8):
        a(f"buffer_load_dwordx4 {vr(W1B+4*f,4)}, v{TMP+10}, s[52:55], {'s48' if f < 4 else 's49'} offen offset:{1024*(f&3)}")
    srd(a, 56, 14, 512)
    B1 = TMP + 12
    a(f"s_lshl_b32 s50, s22, 6", f"v_lshlrev_b32 v{TMP+11}, 3, v3")
    a(f"buffer_load_dwordx2 {vr(B1,2)}, v{TMP+11}, s[56:59], s50 offen", f"buffer_load_dwordx2 {vr(B1+2,2)}, v{TMP+11}, s[56:59], s50 offen offset:32")
    a("s_lshl_b32 s50, s26, 11", "s_add_u32 s50, s50, 131072")
    a(f"buffer_load_dwordx4 {vr(W1C,4)}, v{TMP+10}, s[52:55], s50 offen", f"buffer_load_dwordx4 {vr(W1C+4,4)}, v{TMP+10}, s[52:55], s50 offen offset:1024")
    a("s_add_u32 s48, s48, 65536", "s_add_u32 s49, s49, 65536")
    for f in range(8):
        a(f"buffer_load_dwordx4 {vr(W2+4*f,4)}, v{TMP+10}, s[52:55], {'s48' if f < 4 else 's49'} offen offset:{1024*(f&3)}")
    NLATE = 8 + 2 + 2 + 8
    a.c("LDS init")
    Z = T
    a(f"v_mov_b32 v{Z}, 0", f"v_mov_b32 v{Z+1}, 0", f"v_mov_b32 v{Z+2}, 0", f"v_mov_b32 v{Z+3}, 0")
    a(f"v_mov_b32 v{Z+4}, -1", f"v_mov_b32 v{Z+5}, 0xffff", f"v_mov_b32 v{Z+6}, -1", f"v_mov_b32 v{Z+7}, 0xffff")
    for i in range(4): a(f"v_mov_b32 v{Z+8+i}, {HB + 40*RS}")
    a(f"v_lshlrev_b32 v{Z+12}, 4, v0", f"v_add_u32 v{Z+13}, {HB}, v{Z+12}", f"v_add_u32 v{Z+14}, {LIST}, v{Z+12}")
    for k in range(8): a(f"ds_write_b128 v{Z+13}, {vr(Z,4)} offset:{8192*k}")
    for k in range(2): a(f"ds_write_b128 v{Z+14}, {vr(Z+4,4)} offset:{8192*k}")
    nl3 = (2 * LSTEPS * 256 - 16384) // 16
    a(f"v_cmp_gt_u32 vcc, {nl3}, v0", "s_and_saveexec_b64 s[40:41], vcc", f"ds_write_b128 v{Z+14}, {vr(Z+4,4)} offset:16384", "s_mov_b64 exec, s[40:41]")
    a(f"v_cmp_gt_u32 vcc, {2*LSTEPS*32//16}, v0", "s_and_saveexec_b64 s[40:41], vcc", f"ds_write_b128 v{Z+14}, {vr(Z+8,4)} offset:{QN-LIST}", "s_mov_b64 exec, s[40:41]")
    a.c("static registers")
    srd(a, SA, 20, 0 if opt.noa else N, stride=512)
    srd(a, SE, 6, 0 if opt.noea else E, stride=32)
    t0, t1, t2 = TMP+24, TMP+25, TMP+26
    a(f"v_and_b32 v{t0}, 1, v5", f"v_lshlrev_b32 v{t0}, 4, v{t0}", f"v_mov_b32 v{t1}, 0x3f80", f"v_lshlrev_b32 v{t0}, v{t0}, v{t1}")
    a(f"v_lshlrev_b32 v{t1}, 2, v6", f"v_lshrrev_b32 v{t2}, 1, v5", f"v_xor_b32 v{t1}, v{t1}, v{t2}")
    for m in range(2):
        for d in range(4):
            a(f"v_cmp_eq_u32 vcc, {8*m+d}, v{t1}", "s_nop 1", f"v_cndmask_b32 v{I0+4*m+d}, 0, v{t0}, vcc")
    a(f"v_and_b32 v{t0}, 1, v5", f"v_lshlrev_b32 v{t0}, 4, v{t0}", f"v_and_b32 v{t1}, 4, v5", f"v_lshl_or_b32 v{t0}, v{t1}, 3, v{t0}")
    a(f"v_lshrrev_b32 v{t1}, 4, v5", f"v_cmp_eq_u32 vcc, v{t1}, v6", "s_nop 1", f"v_cndmask_b32 v{SHF}, 63, v{t0}, vcc")
    a(f"v_mov_b32 v{FLAG+1}, 0", f"v_mov_b32 v{DMAX}, 0")
    P = TMP + 27
    a(f"v_and_b32 v{P}, 4, v5", f"v_lshlrev_b32 v{P}, 2, v{P}", f"v_and_b32 v{t0}, 1, v5", f"v_lshl_or_b32 v{P}, v{t0}, 3, v{P}",
      f"v_lshrrev_b32 v{t0}, 2, v5", f"v_and_b32 v{t0}, 6, v{t0}", f"v_or_b32 v{P}, v{P}, v{t0}",
      f"v_bfe_u32 v{t0}, v5, 1, 1", f"v_or_b32 v{P}, v{P}, v{t0}")
    a(f"s_mul_i32 s48, s27, {LSTEPS*256}", f"s_add_u32 s48, s48, {LIST}", f"s_mul_i32 s49, s27, {LSTEPS*32}", f"s_add_u32 s49, s49, {QN}")
    a(f"v_lshrrev_b32 v{t0}, 3, v2", f"v_lshl_add_u32 v{LA}, v{t0}, 3, s48", f"v_lshl_add_u32 v{LE}, v{P}, 3, s48")
    a(f"v_lshrrev_b32 v{t0}, 2, v4", f"v_lshl_add_u32 v{t0}, v6, 2, v{t0}", f"v_lshl_add_u32 v{LQB}, v{t0}, 2, s49", f"v_lshl_add_u32 v{LQH}, v6, 3, s49")
    a(f"v_mov_b32 v{ADV1}, 1024", f"v_mov_b32 v{ADV1+1}, 1024", f"v_mov_b32 v{ADV2}, 128", f"v_mov_b32 v{ADV2+1}, 128")
    a("s_lshl_b32 s48, s26, 8", f"v_lshl_add_u32 v{HCON}, v5, 2, s48", f"v_mov_b32 v{HCON+1}, v{HCON}")
    a("s_lshl_b32 s48, s26, 7", "s_add_u32 s48, s48, 1024")
    a(f"v_and_b32 v{t0}, 1, v3", f"v_lshl_add_u32 v{BCON}, v{t0}, 5, s48", f"v_and_b32 v{t0}, 3, v2", f"v_lshl_add_u32 v{BCON}, v{t0}, 3, v{BCON}")
    a(f"v_lshlrev_b32 v{EID+1}, 4, v6")
    a(f"v_and_b32 v{t0}, 7, v2", f"v_xor_b32 v{t0}, v{t0}, v3", f"v_lshlrev_b32 v{t0}, 4, v{t0}", f"v_xor_b32 v{t1}, 64, v{t0}")
    a("s_lshl_b32 s48, s26, 7")
    for q in range(4):
        a(f"s_add_u32 s49, s48, {WS_ATAB - 1024*q}", f"v_add_u32 v{IDX+2*q+1}, s49, v{t0 if q % 2 == 0 else t1}")
    a("s_lshl_b32 s51, s22, 13")
    a("s_add_u32 s50, s51, 4096")
    a(f"v_bfe_u32 v{t0}, v{P}, 1, 3", f"v_xor_b32 v{t0}, v{t0}, v6", f"v_lshlrev_b32 v{t0}, 4, v{t0}", f"v_lshl_add_u32 v{t0}, v{P}, 7, v{t0}", f"v_add_u32 v{t0}, s51, v{t0}")
    for c in range(4): a(f"v_xor_b32 v{RD+c}, {32*c}, v{t0}")
    a(f"v_mov_b32 v{TMP+28}, 1", f"s_mov_b32 s42, 0xA0000000", f"s_mov_b32 s43, 0x7fc")
    a(f"v_mul_u32_u24 v7, {EPC}, v7")
    a("s_waitcnt lgkmcnt(0)", "s_barrier")
    stamp(a, 1)
    KEY, RNK = TMP + 32, TMP + 40
    a(f"s_waitcnt vmcnt({NLATE + 1})" )
    stamp(a, 2)
    def ph1(e):
        a(f"v_lshrrev_b32 v{KEY+e}, 9, v{REC+e}", f"v_and_b32 v{KEY+e}, s43, v{KEY+e}", f"v_add_u32 v{KEY+e}, {CNT2}, v{KEY+e}",
          f"v_cmpx_gt_u32 vcc, s42, v{REC+e}")
        a(f"ds_add_rtn_u32 v{RNK+e}, v{KEY+e}, v{TMP+28}", "s_mov_b64 exec, -1")
    for e in range(4): ph1(e)
    a(f"v_cmp_gt_u32 vcc, s42, v{REC+4}", "s_mov_b64 s[66:67], vcc", "s_cbranch_vccz K2_p1done")
    for e in range(4, 8): ph1(e)
    a(f"v_cmp_eq_u32 vcc, {-2}, v{REC+7}", "s_cbranch_vccz K2_p1done")
    a(f"v_mov_b32 v{t0}, {MISC+8}", f"ds_write_b32 v{t0}, v{TMP+28}")
    a("K2_p1done:")
    a(f"s_waitcnt vmcnt({NLATE}) lgkmcnt(0)", "s_barrier")
    stamp(a, 3)
    XF = AOP - 16
    a("s_cmp_lg_u32 s22, 0", "s_cbranch_scc1 K2_notab")
    c0 = TMP + 48
    d_, k8, rt, hj, nj, sz, Lx, tt = [TMP + 54 + i for i in range(8)]
    a(f"v_min_u32 v{t0}, {NPB-1}, v2", f"v_lshlrev_b32 v{t0}, 5, v{t0}", f"v_add_u32 v{t0}, {CNT2}, v{t0}")
    a(f"ds_read_b128 {vr(c0,4)}, v{t0}", f"ds_read_b32 v{c0+4}, v{t0} offset:16")
    a(f"v_lshlrev_b32 v{hj}, 2, v4", f"v_add_u32 v{hj}, {HIST+4}, v{hj}")
    a("s_waitcnt lgkmcnt(0)")
    a(f"v_add_u32 v{c0+1}, v{c0}, v{c0+1}", f"v_add_u32 v{c0+2}, v{c0+1}, v{c0+2}", f"v_add_u32 v{c0+3}, v{c0+2}, v{c0+3}", f"v_add_u32 v{d_}, v{c0+3}, v{c0+4}")
    a(f"v_add_u32 v{k8}, 7, v{d_}", f"v_lshrrev_b32 v{k8}, 3, v{k8}", f"v_min_u32 v{k8}, 16, v{k8}")
    a(f"v_lshlrev_b32 v{tt}, 2, v{k8}", f"v_add_u32 v{t1}, {HIST}, v{tt}")
    a(f"v_cmp_lt_u32 s[68:69], {64}, v{d_}" if False else f"v_mov_b32 v{t2}, 128", f"v_cmp_lt_u32 s[68:69], v{t2}, v{d_}")
    a(f"s_mov_b64 exec, {hex((1<<NPB)-1)}" if False else f"s_mov_b32 exec_lo, -1\ns_mov_b32 exec_hi, {hex((1<<(NPB-32))-1)}")
    a(f"ds_add_rtn_u32 v{rt}, v{t1}, v{TMP+28}", "s_mov_b64 exec, -1")
    a(f"ds_read_b32 v{nj}, v{hj}", "s_waitcnt lgkmcnt(0)")
    a.c("suffix sum within 16-lane rows: n_j = #(k8 > j)")
    for sh in (1, 2, 4, 8):
        a("s_nop 1", f"v_add_u32_dpp v{nj}, v{nj}, v{nj} row_shl:{sh} row_mask:0xf bank_mask:0xf" if False else
          f"v_mov_b32 v{t2}, 0\ns_nop 1\nv_mov_b32_dpp v{t2}, v{nj} row_shl:{sh} row_mask:0xf bank_mask:0xf\nv_add_u32 v{nj}, v{nj}, v{t2}")
    a.c("sorted index: n_{k8} + rtn   (k8 = 16 -> 0)")
    a(f"ds_bpermute_b32 v{Lx}, v{tt}, v{nj}")
    a.c("group sizes: row0 (n+1)>>1, row1 n>>1")
    a(f"v_and_b32 v{t2}, 1, v3", f"v_xor_b32 v{t2}, 1, v{t2}", f"v_add_u32 v{hj}, v{nj}, v{t2}", f"v_lshrrev_b32 v{hj}, 1, v{hj}")
    a(f"v_max_u32 v{sz}, 4, v{hj}", f"v_cmp_eq_u32 vcc, 0, v{hj}", "s_nop 1", f"v_cndmask_b32 v{sz}, v{sz}, v{hj}, vcc")
    a(f"v_mov_b32 v{t1}, v{sz}")
    for sh in (1, 2, 4, 8):
        a(f"v_mov_b32 v{t2}, 0", "s_nop 1", f"v_mov_b32_dpp v{t2}, v{t1} row_shr:{sh} row_mask:0xf bank_mask:0xf", f"v_add_u32 v{t1}, v{t1}, v{t2}")
    a(f"v_sub_u32 v{t1}, v{t1}, v{sz}")
    a(f"v_add_u32 v{t2}, v{t1}, v{hj}", f"v_cndmask_b32 v{t2}, v{t2}, v{hj}, vcc")
    a(f"v_add_u32 v{t2}, 3, v{t2}", f"v_lshrrev_b32 v{t2}, 2, v{t2}")
    a(f"v_and_b32 v{t0}, 1, v3", f"v_lshlrev_b32 v{sz}, 2, v{t0}", f"v_add_u32 v{sz}, {MISC}, v{sz}", f"ds_max_u32 v{sz}, v{t2}")
    a(f"v_cmp_lt_u32 vcc, {SMAX}, v{t2}", "s_or_b64 s[68:69], s[68:69], vcc")
    a.c("LV[16g+j] = {LIST + g*LS*256 + 64 L, L}")
    a(f"v_mul_u32_u24 v{t0}, {LSTEPS*256}, v{t0}", f"v_lshl_add_u32 v{t0}, v{t1}, 6, v{t0}", f"v_add_u32 v{t0}, {LIST}, v{t0}")
    a(f"v_lshlrev_b32 v{t2}, 3, v5", f"v_add_u32 v{t2}, {LV}, v{t2}", f"ds_write_b64 v{t2}, {vr(t0,2)}")
    a("s_waitcnt lgkmcnt(2)")
    a(f"v_cmp_eq_u32 vcc, 16, v{k8}", "s_nop 1", f"v_cndmask_b32 v{Lx}, v{Lx}, 0, vcc" if False else f"v_cndmask_b32_e64 v{Lx}, v{Lx}, 0, vcc")
    a(f"v_add_u32 v{Lx}, v{Lx}, v{rt}")
    a(f"v_and_b32 v{rt}, 1, v{Lx}", f"v_lshrrev_b32 v{Lx}, 1, v{Lx}")
    a(f"v_lshlrev_b32 v{hj}, 7, v{rt}")
    e0 = TMP + 62
    a(f"v_lshlrev_b32 v{e0+1}, 6, v{Lx}", f"v_lshlrev_b32 v{t0}, 6, v2", f"v_add_u32 v{t0}, {TAB}, v{t0}")
    a(f"s_mov_b32 exec_hi, {hex((1<<(NPB-32))-1)}")
    for c in range(5):
        if c == 0: a(f"v_mov_b32 v{e0}, v{hj}")
        else: a(f"v_add_u32 v{e0}, v{hj}, v{c0+c-1}")
        a(f"ds_write_b64 v{t0}, {vr(e0,2)} offset:{8*c}")
    a.c("NINFO[n] = {deg, k8 | idx<<8 | g<<16}")
    a(f"v_lshl_or_b32 v{k8}, v{Lx}, 8, v{k8}", f"v_lshl_or_b32 v{k8}, v{rt}, 16, v{k8}")
    a(f"v_lshlrev_b32 v{t0}, 3, v2", f"v_add_u32 v{t0}, {NINFO}, v{t0}", f"ds_write_b64 v{t0}, {vr(d_,2)}")
    a("s_mov_b64 exec, -1")
    if opt.force_slow: a("s_mov_b64 s[68:69], 1")
    a("s_cmp_eq_u64 s[68:69], 0", "s_cbranch_scc1 K2_notab")
    a(f"v_mov_b32 v{t0}, {MISC+8}", f"ds_write_b32 v{t0}, v{TMP+28}")
    a("K2_notab:")
    assert d_ % 2 == 0 and e0 % 2 == 0 and t0 % 2 == 0 and c0 % 2 == 0
    a.c("entry words: REC -> (eid, src|flag)")
    EW = TMP + 48 - 0
    EW = EA
    a(f"s_mov_b32 s44, 0x3fff", f"v_mov_b32 v{t2}, 0x3f800000")
    for e in range(8):
        if e == 4: a("s_cmp_eq_u64 s[66:67], 0", "s_cbranch_scc1 K2_ew")
        a(f"v_lshrrev_b32 v{EW+2*e}, 20, v{REC+e}", f"v_add_u32 v{EW+2*e}, v{EW+2*e}, v7", f"v_and_or_b32 v{EW+2*e+1}, v{REC+e}, s44, v{t2}")
        a(f"v_lshl_add_u32 v{KEY+e}, v{KEY+e}, 1, {0}" if False else f"v_lshlrev_b32 v{KEY+e}, 1, v{KEY+e}\nv_add_u32 v{KEY+e}, {(TAB - 2*CNT2) & 0xffffffff}, v{KEY+e}")
    a("K2_ew:")
    a("s_waitcnt lgkmcnt(0)", "s_barrier")
    stamp(a, 4)
    a(f"v_mov_b32 v{t0}, {MISC}", f"ds_read_b128 {vr(TMP+48,4)}, v{t0}")
    TT = AOP
    def ph3(es):
        for e in es:
            a(f"v_cmpx_gt_u32 vcc, s42, v{REC+e}", f"ds_read_b64 {vr(TT+2*e,2)}, v{KEY+e}", "s_mov_b64 exec, -1")
        a("s_waitcnt lgkmcnt(0)")
        yield
        for e in es:
            a(f"v_add_u32 v{RNK+e}, v{RNK+e}, v{TT+2*e}", f"v_and_b32 v{KEY+e}, 0xf8, v{RNK+e}", f"v_add_u32 v{KEY+e}, {LV}, v{KEY+e}",
              f"ds_read_b32 v{TT+2*e}, v{KEY+e}")
        for e in es:
            a(f"v_and_b32 v{RNK+e}, 7, v{RNK+e}", f"v_lshl_add_u32 v{RNK+e}, v{RNK+e}, 3, v{TT+2*e+1}")
        a("s_waitcnt lgkmcnt(0)")
        for e in es:
            a(f"v_add_u32 v{RNK+e}, v{RNK+e}, v{TT+2*e}", f"v_cmpx_gt_u32 vcc, s42, v{REC+e}", f"ds_write_b64 v{RNK+e}, {vr(EW+2*e,2)}", "s_mov_b64 exec, -1")
    g = ph3(range(4)); next(g)
    a(f"v_readfirstlane_b32 s70, v{TMP+48}", f"v_readfirstlane_b32 s71, v{TMP+49}", f"v_readfirstlane_b32 s72, v{TMP+50}")
    a("s_nop 3", "s_cmp_eq_u32 s27, 0", "s_cselect_b32 s70, s70, s71")
    a("s_cmp_eq_u32 s72, 0", "s_cselect_b32 s70, s70, 0", "s_cbranch_scc0 K2_p3done")
    for _ in g: pass
    a("s_cmp_eq_u64 s[66:67], 0", "s_cbranch_scc1 K2_p3q")
    for _ in ph3(range(4, 8)): pass
    a("K2_p3q:")
    a.c("QN fill: wave w handles levels w, w+8; lane n = node")
    q0 = TMP + 52
    a(f"v_lshlrev_b32 v{t0}, 3, v2", f"v_add_u32 v{t0}, {NINFO}, v{t0}", f"ds_read_b32 v{q0}, v{t0} offset:4")
    a(f"v_mul_u32_u24 v{q0+1}, {RS}, v2", f"v_add_u32 v{q0+1}, {HB}, v{q0+1}")
    a(f"s_lshl_b32 s48, s22, 3", f"s_add_u32 s48, s48, {LV}", "s_waitcnt lgkmcnt(0)")
    a(f"v_bfe_u32 v{q0+2}, v{q0}, 16, 1", f"v_lshl_add_u32 v{t0}, v{q0+2}, 7, s48")
    a(f"ds_read_b32 v{q0+3}, v{t0} offset:4", f"ds_read_b32 v{q0+4}, v{t0} offset:68")
    a(f"v_mul_u32_u24 v{q0+2}, {LSTEPS*32}, v{q0+2}", f"v_add_u32 v{q0+2}, {QN}, v{q0+2}")
    a(f"v_bfe_u32 v{q0+5}, v{q0}, 8, 8", f"v_and_b32 v{q0}, 0xff, v{q0}", "s_add_u32 s49, s22, 8", "s_waitcnt lgkmcnt(0)")
    for i, sj in ((3, "s22"), (4, "s49")):
        a(f"v_add_u32 v{q0+i}, v{q0+i}, v{q0+5}", f"v_lshrrev_b32 v{t0}, 2, v{q0+i}", f"v_and_b32 v{q0+i}, 3, v{q0+i}",
          f"v_lshl_add_u32 v{t0}, v{t0}, 5, v{q0+2}", f"v_lshl_add_u32 v{t0}, v{q0+i}, 2, v{t0}")
        a(f"s_mov_b32 exec_hi, {hex((1<<(NPB-32))-1)}", f"v_cmpx_lt_u32 vcc, {sj}, v{q0}")
        a(f"ds_write2_b32 v{t0}, v{q0+1}, v{q0+1} offset0:0 offset1:4", "s_mov_b64 exec, -1")
    a("K2_p3done:")
    a.c("x fragments -> regs (ring area is reused after the barrier)")
    XF = TMP + 24
    assert XF + 48 <= NV
    a("s_waitcnt lgkmcnt(0)")
    xa = TMP + 0
    for s in range(4):
        a(f"v_add_u32 v{xa+s}, {4*s}, v3", f"v_xor_b32 v{xa+s}, v{xa+s}, v4", f"v_lshlrev_b32 v{xa+s}, 4, v{xa+s}", f"v_lshl_add_u32 v{xa+s}, v4, 8, v{xa+s}")
    for n in range(3):
        for s in range(4):
            a(f"ds_read_b128 {vr(XF+16*n+4*s,4)}, v{xa+s} offset:{4096*n}")
    a("s_waitcnt lgkmcnt(0)", "s_barrier")
    stamp(a, 5)
    def rd_idx(off): return [f"ds_read_u16 v{IDX+2*q}, v{LA} offset:{off*256 + 64*q + 4}" for q in range(4)]
    def rd_eid(off): return f"ds_read_b32 v{EID}, v{LE} offset:{off*256}"
    def dma(q): return f"buffer_load_dwordx4 {vr(IDX+2*q,2)}, s[{SA}:{SA+3}], 0 idxen offen offset:{1024*q} lds"
    def ld_ea(u): return f"buffer_load_dwordx4 {vr(EA+4*u,4)}, {vr(EID,2)}, s[{SE}:{SE+3}], 0 idxen offen"
    def m0(slot): return f"s_mov_b32 m0, s{51 - slot}"
    a(rd_eid(0), *rd_idx(0), m0(0), "s_waitcnt lgkmcnt(0)", ld_ea(0), *[dma(q) for q in range(4)])
    a(rd_eid(1), *rd_idx(1), m0(1), "s_waitcnt lgkmcnt(0)", ld_ea(1), *[dma(q) for q in range(4)])
    a(rd_eid(2), *rd_idx(2), "s_waitcnt lgkmcnt(0)", ld_ea(2), rd_eid(3))
    a(f"ds_read_u16 v{FLAG}, v{LE} offset:6", f"ds_read_b32 v{QB}, v{LQB}", f"ds_read_b32 v{QB+1}, v{LQB} offset:32")
    BC = TMP + 16
    a("s_waitcnt vmcnt(11)")
    for t in range(2):
        a(f"v_lshlrev_b32 v{BC+4*t}, 16, v{B1+2*t}", f"v_and_b32 v{BC+4*t+1}, 0xffff0000, v{B1+2*t}",
          f"v_lshlrev_b32 v{BC+4*t+2}, 16, v{B1+2*t+1}", f"v_and_b32 v{BC+4*t+3}, 0xffff0000, v{B1+2*t+1}")
    AC = AOP
    a(f"v_mul_u32_u24 v{xa}, {RS}, v4", f"v_lshl_add_u32 v{xa}, v3, 3, v{xa}", "s_lshl_b32 s48, s22, 6", f"s_add_u32 s48, s48, {HB+1024}", f"v_add_u32 v{xa}, s48, v{xa}")
    a(f"s_mov_b32 s44, {f32(-LOG2E)}", "s_mov_b32 s45, s44")
    for s in range(4):
        for n in range(3):
            for t in range(2):
                r = AC + 4*(2*n+t)
                c = vr(BC+4*t, 4) if s == 0 else vr(r, 4)
                a(f"v_mfma_f32_16x16x32_bf16 {vr(r,4)}, {vr(W1B+16*t+4*s,4)}, {vr(XF+16*n+4*s,4)}, {c}")
    a("s_nop 7")
    for n in range(3):
        if n == 2: a("s_mov_b32 exec_lo, 0x00ff00ff", "s_mov_b32 exec_hi, 0x00ff00ff")
        for t in range(2):
            r = AC + 4*(2*n+t)
            a(f"v_pk_mul_f32 {vr(r,2)}, {vr(r,2)}, s[44:45]", f"v_pk_mul_f32 {vr(r+2,2)}, {vr(r+2,2)}, s[44:45]",
              f"v_cvt_pk_bf16_f32 v{r}, v{r}, v{r+1}", f"v_cvt_pk_bf16_f32 v{r+1}, v{r+2}, v{r+3}",
              f"ds_write_b64 v{xa}, {vr(r,2)} offset:{16*n*RS + 32*t}")
    a("s_mov_b64 exec, -1")
    a("s_waitcnt lgkmcnt(0)", "s_barrier")
    stamp(a, 6)
    a("s_cmp_eq_u32 s70, 0", "s_cbranch_scc1 K2_mdone")
    def rd_aop(c, slot): return f"ds_read_b128 {vr(AOP+4*c,4)}, v{RD+c} offset:{4096*slot}"
    def rd_bop(t): return f"ds_read_b64_tr_b16 {vr(BOP,2)}, v{BADDR} offset:{64*t}"
    def mfmas(t, u):
        y = vr(Y[t], 16)
        return [f"v_mfma_f32_32x32x16_bf16 {y}, {vr(EA+4*u,4)}, {vr(W1C+4*t,4)}, 0",
                f"v_mfma_f32_32x32x16_bf16 {y}, {vr(AOP+8*t,4)}, {vr(I0,4)}, {y}",
                f"v_mfma_f32_32x32x16_bf16 {y}, {vr(AOP+8*t+4,4)}, {vr(I1,4)}, {y}",
                f"v_mfma_f32_32x32x8_bf16 {y}, {vr(SEL,2)}, {vr(BOP,2)}, {y}"]
    a(f"v_lshlrev_b64 {vr(SEL,2)}, v{SHF}, {vr(FLAG,2)}", f"v_add_u32 v{BADDR}, v{QB}, v{BCON}")
    a(f"v_add_u32 v{HADDR}, {HB+40*RS}, v{HCON}", f"v_mov_b32 v{HADDR+1}, v{HADDR}")
    a(f"v_mov_b32 v{NN}, 0", f"v_mov_b32 v{NN+1}, 0", f"v_mov_b32 v{DD}, 1.0", f"v_mov_b32 v{DD+1}, 1.0")
    a(rd_bop(0), "s_waitcnt vmcnt(6)")
    stamp(a, 7)
    a(*[rd_aop(c, 0) for c in range(4)], m0(0), "s_waitcnt lgkmcnt(0)")
    a(*[dma(q) for q in range(4)], ld_ea(3))
    a(*mfmas(0, 0))
    a(rd_bop(1), f"v_add_u32 v{BADDR}, v{QB+1}, v{BCON}")
    a("s_nop 7", "s_nop 7")
    a("s_mov_b32 s71, 0")
    def block(u, t):
        yc = Y[t]
        ex = [f"v_exp_f32 v{T+r}, v{yc+r}" for r in range(16)]
        rc = [f"v_rcp_f32 v{DD}, v{DD}", f"v_rcp_f32 v{DD+1}, v{DD+1}"]
        po = 128 * (1 - t)
        old = [f"ds_read_b32 v{OLD}, v{HADDR} offset:{po}", f"ds_read_b32 v{OLD+1}, v{HADDR+1} offset:{po}"]
        if t == 0:
            mf = mfmas(1, u); ix = rd_idx(u + 3); slot = (u + 1) & 1
            f = [old[0], old[1], ix[0], ix[1], ix[2], ix[3], "s_waitcnt vmcnt(6)", rd_aop(0, slot), rd_aop(1, slot),
                 rd_aop(2, slot), rd_aop(3, slot), rd_bop(0), rd_eid(u + 4),
                 f"ds_read_u16 v{FLAG}, v{LE} offset:{(u+1)*256+6}", f"ds_read_b64 {vr(QH,2)}, v{LQH} offset:{u*32}"]
            nafter = 12
        else:
            mf = mfmas(0, (u + 1) & 3)
            f = [old[0], old[1], m0((u + 1) & 1), dma(0), dma(1), dma(2), dma(3), ld_ea(u),
                 f"ds_read_b32 v{QB}, v{LQB} offset:{(u+2)*32}", None, None, rd_bop(1)]
            nafter = 2
        tr = ex[:9] + rc + ex[9:]
        a("s_waitcnt lgkmcnt(0)")
        for i, x in enumerate(tr):
            if i in (0, 3, 6, 9): a(mf[i // 3])
            a(x)
            if i < len(f) and f[i]: a(f[i])
        a(f"s_waitcnt lgkmcnt({nafter})")
        a(f"v_pk_fma_f32 {vr(OLD,2)}, {vr(NN,2)}, {vr(DD,2)}, {vr(OLD,2)}")
        a(f"v_pk_add_f32 {vr(DD,2)}, {vr(T,2)}, 1.0 op_sel_hi:[1,0]")
        a(f"ds_write_b32 v{HADDR}, v{OLD} offset:{po}", f"ds_write_b32 v{HADDR+1}, v{OLD+1} offset:{po}")
        nc = yc
        for j in range(1, 8):
            tt_, yy = vr(T + 2*j, 2), vr(yc + 2*j, 2)
            a(f"v_pk_fma_f32 {vr(MM,2)}, {vr(nc,2)}, {tt_}, {vr(nc,2)}",
              f"v_pk_fma_f32 {vr(NN,2)}, {yy}, {vr(DD,2)}, {vr(MM,2)}",
              f"v_pk_fma_f32 {vr(DD,2)}, {vr(DD,2)}, {tt_}, {vr(DD,2)}")
            nc = NN
            if j == 4:
                a("s_waitcnt lgkmcnt(2)")
                if t == 0:
                    a(f"v_lshlrev_b64 {vr(SEL,2)}, v{SHF}, {vr(FLAG,2)}", f"v_lshl_add_u64 {vr(HADDR,2)}, {vr(QH,2)}, 0, {vr(HCON,2)}")
                else:
                    a(f"v_add_u32 v{BADDR}, v{QB}, v{BCON}")
        a(f"v_max3_f32 v{DMAX}, v{DMAX}, v{DD}, v{DD+1}")
    if opt.x_one: a("s_cmp_eq_u32 s27, 1", "s_cbranch_scc1 K2_mdone")
    if opt.x_prio == 1: a("s_cmp_eq_u32 s27, 0", "s_cbranch_scc1 K2_loop", "s_setprio 1")
    a("K2_loop:")
    for u in range(4):
        n0 = len(a.l)
        block(u, 0)
        block(u, 1)
        body = a.l[n0:]; del a.l[n0:]
        for ln in body:
            x = ln.strip()
            if opt.x_nodma and (x.startswith("buffer_") or "vmcnt" in x or "m0" in x): continue
            if opt.x_nolds and (x.startswith("ds_") or "lgkmcnt" in x): continue
            if opt.x_norw and (x.startswith("ds_write") or (x.startswith("ds_read_b32") and f"v{HADDR}" in x or f"v{HADDR+1} " in x)): continue
            if opt.x_noidx and x.startswith("ds_read_u16"): continue
            a.l.append(ln)
        a("s_add_u32 s71, s71, 1", "s_cmp_ge_u32 s71, s70")
        if u < 3:
            a("s_cbranch_scc1 K2_lend")
        else:
            a(f"v_lshl_add_u64 {vr(LA,2)}, {vr(LA,2)}, 0, {vr(ADV1,2)}", f"v_lshl_add_u64 {vr(LQB,2)}, {vr(LQB,2)}, 0, {vr(ADV2,2)}")
            a("s_cbranch_scc0 K2_loop")
    a("K2_lend:")
    a(f"ds_read_b32 v{OLD}, v{HADDR} offset:128", f"ds_read_b32 v{OLD+1}, v{HADDR+1} offset:128")
    a(f"v_rcp_f32 v{DD}, v{DD}", f"v_rcp_f32 v{DD+1}, v{DD+1}", "s_waitcnt lgkmcnt(0)")
    a(f"v_pk_fma_f32 {vr(OLD,2)}, {vr(NN,2)}, {vr(DD,2)}, {vr(OLD,2)}")
    a(f"ds_write_b32 v{HADDR}, v{OLD} offset:128", f"ds_write_b32 v{HADDR+1}, v{OLD+1} offset:128")
    a("K2_mdone:")
    stamp(a, 8)
    a("s_mov_b32 s73, 0")
    a.c("epilogue constants")
    srd(a, 56, 18, 256)
    srd(a, 44, 24, N * 256)
    B2 = 8
    a("s_lshl_b32 s48, s22, 5", f"v_lshlrev_b32 v{B2+8}, 3, v3", f"buffer_load_dwordx2 {vr(B2+4,2)}, v{B2+8}, s[56:59], s48 offen")
    a("s_waitcnt vmcnt(0) lgkmcnt(0)", "s_barrier")
    stamp(a, 9)
    a("K2_conv:")
    CV = 72
    a(f"s_mul_i32 s48, s22, {RS}", f"s_add_u32 s48, s48, {HB}", f"v_lshl_add_u32 v{B2+8}, v2, 4, s48")
    for k in range(5): a(f"ds_read_b128 {vr(CV+4*k,4)}, v{B2+8} offset:{8*RS*k}")
    a(f"s_mul_i32 s48, s22, {HSS}", f"v_lshl_add_u32 v{B2+9}, v2, 3, s48")
    a(f"v_lshlrev_b32 v{B2+10}, 3, v4", f"v_add_u32 v{B2+10}, {NINFO}, v{B2+10}")
    DG = 92
    for n in range(3): a(f"ds_read_b32 v{DG+n}, v{B2+10} offset:{128*n}")
    a(f"v_lshlrev_b32 v{B2}, 16, v{B2+4}", f"v_and_b32 v{B2+1}, 0xffff0000, v{B2+4}", f"v_lshlrev_b32 v{B2+2}, 16, v{B2+5}", f"v_and_b32 v{B2+3}, 0xffff0000, v{B2+5}")
    a(f"v_mov_b32 v{B2+6}, 0", f"v_mov_b32 v{B2+7}, 0")
    for k in range(5):
        r = CV + 4*k
        a(f"s_waitcnt lgkmcnt({7-k + k if False else 7})" if False else f"s_waitcnt lgkmcnt({7})" if k == 0 else f"s_waitcnt lgkmcnt({7})")
        a(f"v_pk_fma_f32 {vr(B2+6,2)}, {vr(r,2)}, 0, {vr(B2+6,2)} op_sel_hi:[1,0,1]", f"v_pk_fma_f32 {vr(B2+6,2)}, {vr(r+2,2)}, 0, {vr(B2+6,2)} op_sel_hi:[1,0,1]")
        a(f"v_cvt_pk_bf16_f32 v{r}, v{r}, v{r+1}", f"v_cvt_pk_bf16_f32 v{r+1}, v{r+2}, v{r+3}", f"ds_write_b64 v{B2+9}, {vr(r,2)} offset:{HSB + 8*HSS*k}")
    a.c("flag: D too large, or non-finite sums")
    a(f"v_cmp_u_f32 vcc, v{B2+6}, v{B2+7}", f"s_mov_b32 s48, {f32(2.0**120)}", f"v_cmp_nlt_f32 s[68:69], v{DMAX}, s48", "s_or_b64 vcc, vcc, s[68:69]")
    a(f"v_mov_b32 v{B2+11}, {MISC+8}", "s_cbranch_vccz K2_noflag")
    a(f"v_mov_b32 v{B2+6}, 1", f"ds_write_b32 v{B2+11}, v{B2+6}")
    a("K2_noflag:")
    a(f"v_mul_u32_u24 v{B2+9}, {HSS}, v4", f"v_lshl_add_u32 v{B2+9}, v3, 4, v{B2+9}")
    a("s_waitcnt lgkmcnt(0)", "s_barrier")
    a(f"ds_read_b32 v{B2+6}, v{B2+11}")
    HF = 96
    hf = [96, 184, 216]
    for n in range(3):
        for s in range(8):
            a(f"ds_read_b128 {vr(hf[n]+4*s,4)}, v{B2+9} offset:{HSB + 16*HSS*n + 64*s}")
            if n == 0 and s == 7:
                a("s_waitcnt lgkmcnt(8)", f"v_readfirstlane_b32 s72, v{B2+6}", "s_nop 3", "s_andn2_b32 s72, s72, s73", "s_cbranch_scc1 K2_slow")
    for n in range(3): a(f"v_cvt_f32_u32 v{DG+n}, v{DG+n}")
    OC = 128
    a(f"v_lshlrev_b32 v{B2+8}, 8, v4", f"v_lshl_add_u32 v{B2+8}, v3, 3, v{B2+8}")
    a(f"s_mul_i32 s48, s2, {NPB*256}", "s_lshl_b32 s49, s22, 5", "s_add_u32 s48, s48, s49", "s_add_u32 s49, s48, 8192")
    a(f"s_mov_b32 s50, {f32(-math.log(2.0))}")
    for n in range(3):
        a(f"s_waitcnt lgkmcnt({min(15, 16 - 8*n)})")
        if n == 0: a("s_waitcnt lgkmcnt(15)")
        for s in range(8):
            c = "0" if s == 0 else vr(OC+4*n, 4)
            a(f"v_mfma_f32_16x16x32_bf16 {vr(OC+4*n,4)}, {vr(W2+4*s,4)}, {vr(hf[n]+4*s,4)}, {c}")
    a("s_nop 7")
    for n in range(3):
        r = OC + 4*n
        for i in range(4):
            a(f"v_mul_f32 v{r+i}, s50, v{r+i}", f"v_fmac_f32 v{r+i}, v{DG+n}, v{B2+i}")
        a(f"v_cvt_pk_bf16_f32 v{r}, v{r}, v{r+1}", f"v_cvt_pk_bf16_f32 v{r+1}, v{r+2}, v{r+3}")
        if n == 2: a("s_mov_b32 exec_lo, 0x00ff00ff", "s_mov_b32 exec_hi, 0x00ff00ff")
        so = "s48" if n < 2 else "s49"
        if n == 1: a(f"s_add_u32 s48, s48, 4096")
        a(f"buffer_store_dwordx2 {vr(r,2)}, v{B2+8}, s[44:47], {so} offen")
    stamp(a, 10)
    stamps_out(a, 1, 11)
    a("K2_done:", "s_endpgm")
    a("K2_slow:")
    a("s_waitcnt lgkmcnt(0)", "s_mov_b32 s73, 1", f"v_mov_b32 v{DMAX}, 0")
    WS_ = 184
    srd(a, 36, 12, 272 * 512)
    srd(a, 52, 20, N * 512, add=WS_ATAB)
    srd(a, 56, 10, E * 4)
    srd(a, 60, 8, E * 4)
    a("v_lshlrev_b32 v96, 3, v2", f"s_mov_b32 s48, {256*512}", f"s_mov_b32 s49, {264*512}")
    for d in range(16):
        a(f"buffer_load_dwordx2 {vr(98+2*d,2)}, v96, s[36:39], {'s48' if d < 8 else 's49'} offen offset:{512*(d&7)}")
    a.c("zero Hsum rows and degrees")
    for i in range(4): a(f"v_mov_b32 v{72+i}, 0")
    for k in range(5): a(f"ds_write_b128 v{B2+8}, v[72:75] offset:{8*RS*k}")
    a(f"v_lshlrev_b32 v97, 3, v2", f"v_add_u32 v97, {NINFO}, v97", "ds_write_b32 v97, v72")
    a(f"s_mov_b32 s50, {f32(-LOG2E)}", "s_waitcnt vmcnt(0)")
    for d in range(16):
        for i in range(2):
            a(f"v_lshlrev_b32 v{WS_+4*d+2*i}, 16, v{98+2*d+i}", f"v_and_b32 v{WS_+4*d+2*i+1}, 0xffff0000, v{98+2*d+i}")
        for i in range(4): a(f"v_mul_f32 v{WS_+4*d+i}, s50, v{WS_+4*d+i}")
    a("s_waitcnt lgkmcnt(0)", "s_barrier")
    a(f"s_mul_i32 s64, s2, {NPB}", "s_lshl_b32 s65, s22, 8", "v_lshlrev_b32 v98, 2, v2", "v_lshlrev_b32 v99, 4, v2", "v_mov_b32 v100, 1")
    a("K2_s_blk:")
    a("buffer_load_dword v101, v98, s[56:59], s65 offen", "buffer_load_dword v102, v98, s[60:63], s65 offen", "s_waitcnt vmcnt(0)")
    a("v_subrev_u32 v101, s64, v101", f"v_cmp_gt_u32 s[66:67], {NPB}, v101", "s_nop 3")
    a("K2_s_edge:")
    a("s_cmp_eq_u64 s[66:67], 0", "s_cbranch_scc1 K2_s_next")
    a("s_ff1_i32_b64 s68, s[66:67]", "s_bitset0_b64 s[66:67], s68")
    a("v_readlane_b32 s69, v101, s68", "v_readlane_b32 s70, v102, s68")
    a("s_lshl_b32 s71, s68, 5", "s_lshl_b32 s72, s65, 3", "s_add_u32 s71, s71, s72")
    a("s_load_dwordx8 s[92:99], s[6:7], s71")
    a("s_lshl_b32 s70, s70, 9", f"s_mul_i32 s72, s69, {RS}", f"s_add_u32 s72, s72, {HB}", "s_nop 2")
    a("buffer_load_dwordx2 v[104:105], v96, s[52:55], s70 offen")
    a("v_add_u32 v103, s72, v96", "ds_read_b64 v[106:107], v103 offset:1024", "v_add_u32 v103, s72, v99")
    a("s_lshl_b32 s69, s69, 3", f"s_add_u32 s69, s69, {NINFO}", "v_mov_b32 v116, s69")
    a("s_waitcnt vmcnt(0) lgkmcnt(0)")
    for i in range(2):
        a(f"v_lshlrev_b32 v{108+2*i}, 16, v{104+i}", f"v_and_b32 v{109+2*i}, 0xffff0000, v{104+i}",
          f"v_lshlrev_b32 v{112+2*i}, 16, v{106+i}", f"v_and_b32 v{113+2*i}, 0xffff0000, v{106+i}")
    for i in range(4): a(f"v_add_f32 v{108+i}, v{108+i}, v{112+i}")
    for d in range(16):
        a(f"s_lshl_b32 s72, s{92+d//2}, 16" if d % 2 == 0 else f"s_and_b32 s72, s{92+d//2}, 0xffff0000")
        for i in range(4): a(f"v_fmac_f32 v{108+i}, s72, v{WS_+4*d+i}")
    for i in range(4): a(f"v_exp_f32 v{112+i}, v{108+i}")
    a("s_nop 0")
    for i in range(4): a(f"v_add_f32 v{112+i}, 1.0, v{112+i}")
    for i in range(4): a(f"v_rcp_f32 v{112+i}, v{112+i}")
    a("s_nop 0")
    for i in range(4): a(f"v_mul_f32 v{108+i}, v{108+i}, v{112+i}", f"ds_add_f32 v103, v{108+i} offset:{4*i}")
    a("s_mov_b64 exec, 1", "ds_add_u32 v116, v100", "s_mov_b64 exec, -1")
    a("s_branch K2_s_edge")
    a("K2_s_next:")
    a("s_add_u32 s65, s65, 2048", f"s_cmp_lt_u32 s65, {E*4}", "s_cbranch_scc1 K2_s_blk")
    a("s_waitcnt lgkmcnt(0)", "s_barrier", "s_branch K2_conv")
    return K, NV, 100, LDS2

def main(path):
    ref = open(f"cdna_kernels/{NAME}.s.ref").read().split("\n")
    head = [l for l in ref if l.startswith(";") and "@launch" not in l and "Override launch" not in l and "grid=ceil" not in l]
    a = Asm()
    a('.amdgcn_target "amdgcn-amd-amdhsa--gfx950"', ".text")
    k1 = gen_k1(a)
    k2 = gen_k2(a)
    out = "\n".join(head) + "\n"
    out += f"; @launch kernel={k1[0]} grid=(380,1,1) block=(512,1,1) lds={k1[3]}\n"
    out += f"; @launch kernel={k2[0]} grid=({NB},1,1) block=(512,1,1) lds={k2[3]}\n"
    out += a.text()
    out += '.section .rodata,"a"\n'
    for k in (k1, k2):
        out += f""".p2align 6
.amdhsa_kernel {k[0]}
  .amdhsa_next_free_vgpr {k[1]}
  .amdhsa_next_free_sgpr {k[2]}
  .amdhsa_accum_offset {(k[1]+3)//4*4}
  .amdhsa_group_segment_fixed_size 0
  .amdhsa_kernarg_size 88
  .amdhsa_user_sgpr_count 2
  .amdhsa_user_sgpr_kernarg_segment_ptr 1
  .amdhsa_system_sgpr_workgroup_id_x 1
  .amdhsa_float_denorm_mode_32 3
.end_amdhsa_kernel
"""
    open(path, "w").write(out)

if __name__ == "__main__":
    path = f"cdna_kernels/{NAME}.s"
    for x in sys.argv[1:]:
        if x.startswith("-o="): path = x[3:]
        elif "=" in x:
            k, v = x.split("=", 1)
            cur = getattr(opt, k)
            setattr(opt, k, (v not in ("0", "False")) if isinstance(cur, bool) else type(cur)(v))
    main(path)
```
